```python
import torch

def _softmax(x, axis=-1):
    return torch.softmax(x, dim=axis)
def _gelu(x):
    return torch.nn.functional.gelu(x, approximate="tanh")
def _silu(x):
    return torch.nn.functional.silu(x)
def _sigmoid(x):
    return torch.sigmoid(x)
def _layernorm(x, axis=-1, eps=1e-5):
    m = x.mean(dim=axis, keepdim=True)
    v = x.var(dim=axis, keepdim=True, unbiased=False)
    return (x - m) / torch.sqrt(v + eps)
def _scatter_add(tgt, idx, src, axis=0):
    return tgt.clone().index_add_(axis, idx, src)
def _segment_sum(src, seg, n):
    out = torch.zeros((n,) + src.shape[1:], dtype=src.dtype)
    return out.index_add_(0, seg, src)
def _pad(x, pw):
    flat = tuple(v for pair in reversed(pw) for v in pair)
    return torch.nn.functional.pad(x, flat)

kernel_name = 'standalone__weight_only_int_omniquant__prompt'

def setup_inputs():

    _w = (lambda a: (lambda t: t.to(torch.bfloat16) if t.is_floating_point() else t)(torch.as_tensor(a)))
    B, S, D, F = 1, 2048, 576, 4608
    bits = 8
    G = -1 if -1 > 0 else D
    D = (D // G) * G
    ng = D // G
    qmax = (1 << bits) - 1
    qw = torch.randint(0, qmax + 1, (D, F)).to(torch.int32)
    scales = (torch.abs((lambda *s: torch.randn(*s, dtype=torch.bfloat16) * 0.05)(ng, F)) * 0.05 + 0.01).to(float)
    zeros = torch.randint(0, qmax + 1, (ng, F)).to(float)
    act_scale = (torch.abs((lambda *s: torch.randn(*s, dtype=torch.bfloat16) * 0.05)(D)) * 0.5 + 0.5).to(float)
    return {
        "x": _w((lambda *s: torch.randn(*s, dtype=torch.bfloat16) * 0.05)(B, S, D)),
        "qw": _w(qw),
        "scales": _w(scales),
        "zeros": _w(zeros),
        "act_scale": _w(act_scale),
    }

def reference(x, qw, scales, zeros, act_scale):
    B, S, D = x.shape
    ng, F = scales.shape
    G = D // ng
    s = (lambda x, n, axis: torch.repeat_interleave(x, n, dim=axis))(scales, G, axis=0)
    z = (lambda x, n, axis: torch.repeat_interleave(x, n, dim=axis))(zeros, G, axis=0)
    w = ((lambda x, dt: x.to(dt))(qw, x.dtype) - z) * s
    xs = x * (lambda x, dt: x.to(dt))(act_scale, x.dtype)
    return torch.einsum("bsd,df->bsf", xs, w)
```

```python
NAME = "standalone__weight_only_int_omniquant__prompt"

HEADER = """; Kernarg layout for this problem (64 bytes, ptrs only, base s[0:1]):
"""

M, K, N = 2048, 576, 4608
X_BYTES = M * K * 2
QW_BYTES = K * N * 4
SC_BYTES = N * 2
AS_BYTES = K * 2
OUT_BYTES = M * N * 2


class Asm:
    def __init__(self):
        self.lines = []

    def __call__(self, s):
        for l in s.split("\n"):
            self.lines.append("    " + l.strip() if l.strip() and not l.strip().endswith(":") else l.strip())

    def label(self, s):
        self.lines.append(s + ":")

    def comment(self, s):
        self.lines.append("    ; " + s)

    def text(self):
        return "\n".join(self.lines) + "\n"


def vr(a, n=1):
    return f"v{a}" if n == 1 else f"v[{a}:{a+n-1}]"


def ar(a, n=1):
    return f"a{a}" if n == 1 else f"a[{a}:{a+n-1}]"


def sr(a, n=1):
    return f"s{a}" if n == 1 else f"s[{a}:{a+n-1}]"


def kernel_file(launch_lines, kernels):
    out = HEADER
    for l in launch_lines:
        out += l + "\n"
    out += '.amdgcn_target "amdgcn-amd-amdhsa--gfx950"\n.text\n'
    for label, body, d in kernels:
        out += f".globl {label}\n.p2align 8\n.type {label},@function\n{label}:\n"
        out += body
        out += "    s_endpgm\n"
    out += '.section .rodata,"a"\n'
    for label, body, d in kernels:
        out += ".p2align 6\n"
        out += f".amdhsa_kernel {label}\n"
        out += f"  .amdhsa_next_free_vgpr {d['vgpr']}\n"
        out += f"  .amdhsa_next_free_sgpr {d['sgpr']}\n"
        out += f"  .amdhsa_accum_offset {d['accum']}\n"
        out += "  .amdhsa_group_segment_fixed_size 0\n"
        out += "  .amdhsa_kernarg_size 64\n"
        out += "  .amdhsa_user_sgpr_count 2\n"
        out += "  .amdhsa_user_sgpr_kernarg_segment_ptr 1\n"
        out += "  .amdhsa_system_sgpr_workgroup_id_x 1\n"
        for e in d.get("extra", []):
            out += "  " + e + "\n"
        out += ".end_amdhsa_kernel\n"
    return out
```

```python
import sys
from common import *

a = Asm()
a("s_cmp_ge_u32 s2, 2304")
a("s_cbranch_scc1 L_done")
a("s_load_dwordx4 s[4:7], s[0:1], 0")
a("s_load_dwordx4 s[8:11], s[0:1], 16")
a("s_load_dwordx4 s[12:15], s[0:1], 32")
a("s_and_b32 s40, s2, 31")
a("s_lshr_b32 s41, s2, 5")
a("s_waitcnt lgkmcnt(0)")
def srd(d, lo, nbytes):
    a(f"s_mov_b32 s{d}, s{lo}")
    a(f"s_mov_b32 s{d+1}, s{lo+1}")
    a(f"s_mov_b32 s{d+2}, {nbytes}")
    a(f"s_mov_b32 s{d+3}, 0x20000")
srd(16, 4, X_BYTES)
srd(20, 6, QW_BYTES)
srd(24, 8, SC_BYTES)
srd(28, 10, SC_BYTES)
srd(32, 12, AS_BYTES)
srd(36, 14, OUT_BYTES)
a("v_and_b32 v1, 15, v0")
a("v_lshrrev_b32 v2, 4, v0")
a("s_lshl_b32 s42, s40, 6")
a("s_lshl_b32 s43, s41, 6")
a("v_add_u32 v3, s42, v1")
a("s_movk_i32 s44, 1152")
a("v_mul_lo_u32 v3, v3, s44")
a("v_lshl_add_u32 v3, v2, 4, v3")
a("v_lshlrev_b32 v4, 4, v2")
a("s_mov_b32 s45, 147456")
a("v_mul_lo_u32 v5, v2, s45")
a("v_lshl_add_u32 v5, v1, 4, v5")
a("s_lshl_b32 s46, s43, 2")
a("v_add_u32 v5, s46, v5")
a("v_lshlrev_b32 v6, 3, v1")
a("s_lshl_b32 s47, s43, 1")
a("v_add_u32 v6, s47, v6")
a("buffer_load_dwordx2 v[8:9], v6, s[24:27], 0 offen")
a("buffer_load_dwordx2 v[10:11], v6, s[28:31], 0 offen")
for i in range(64):
    a(f"v_accvgpr_write_b32 a{i}, 0")
a("s_waitcnt vmcnt(0)")
a("v_lshlrev_b32 v12, 16, v8")
a("v_and_b32 v13, 0xffff0000, v8")
a("v_lshlrev_b32 v14, 16, v9")
a("v_and_b32 v15, 0xffff0000, v9")
a("v_lshlrev_b32 v16, 16, v10")
a("v_and_b32 v17, 0xffff0000, v10")
a("v_lshlrev_b32 v18, 16, v11")
a("v_and_b32 v19, 0xffff0000, v11")
a("s_mov_b32 s50, 0")
a("s_mov_b32 s51, 0")
a.label("L_k")
XR = 20
AR = 36
QR = 40
for t in range(4):
    a(f"s_add_u32 s52, s50, {t*16*1152}")
    a(f"buffer_load_dwordx4 {vr(XR+4*t,4)}, v3, s[16:19], s52 offen")
a(f"buffer_load_dwordx4 {vr(AR,4)}, v4, s[32:35], s50 offen")
for j in range(8):
    a(f"s_add_u32 s52, s51, {j*18432}")
    a(f"buffer_load_dwordx4 {vr(QR+4*j,4)}, v5, s[20:23], s52 offen")
a("s_waitcnt vmcnt(0)")
AF = 72
for j in range(4):
    a(f"v_lshlrev_b32 v{AF+2*j}, 16, v{AR+j}")
    a(f"v_and_b32 v{AF+2*j+1}, 0xffff0000, v{AR+j}")
T = 80
for t in range(4):
    for j in range(4):
        r = XR + 4*t + j
        a(f"v_lshlrev_b32 v{T}, 16, v{r}")
        a(f"v_and_b32 v{T+1}, 0xffff0000, v{r}")
        a(f"v_mul_f32 v{T}, v{T}, v{AF+2*j}")
        a(f"v_mul_f32 v{T+1}, v{T+1}, v{AF+2*j+1}")
        a(f"v_cvt_pk_bf16_f32 v{r}, v{T}, v{T+1}")
BF = 84
for j in range(8):
    for c in range(4):
        r = QR + 4*j + c
        a(f"v_cvt_f32_i32 v{r}, v{r}")
        a(f"v_sub_f32 v{r}, v{r}, v{16+c}")
        a(f"v_mul_f32 v{r}, v{r}, v{12+c}")
for c in range(4):
    for p in range(4):
        a(f"v_cvt_pk_bf16_f32 v{BF+4*c+p}, v{QR+4*(2*p)+c}, v{QR+4*(2*p+1)+c}")
a("s_nop 1")
for t in range(4):
    for c in range(4):
        acc = (t*4 + c)*4
        a(f"v_mfma_f32_16x16x32_bf16 {ar(acc,4)}, {vr(XR+4*t,4)}, {vr(BF+4*c,4)}, {ar(acc,4)}")
a("s_add_u32 s50, s50, 64")
a(f"s_add_u32 s51, s51, {32*18432}")
a("s_cmp_lt_u32 s50, 1152")
a("s_cbranch_scc1 L_k")
a("s_nop 15")
a("v_lshlrev_b32 v7, 2, v2")
a("v_add_u32 v7, s42, v7")
a("s_movk_i32 s44, 9216")
a("v_mul_lo_u32 v7, v7, s44")
a("v_add_u32 v7, v7, v6")
for t in range(4):
    for r in range(4):
        for c in range(4):
            a(f"v_accvgpr_read_b32 v{20+c}, a{(t*4+c)*4+r}")
        a("v_cvt_pk_bf16_f32 v24, v20, v21")
        a("v_cvt_pk_bf16_f32 v25, v22, v23")
        a(f"s_mov_b32 s52, {(t*16+r)*9216}")
        a("buffer_store_dwordx2 v[24:25], v7, s[36:39], s52 offen")
        a("s_nop 1")
a.label("L_done")

txt = kernel_file(["; @launch grid=(2304,1,1) block=(64,1,1) lds=0"],
                  [(NAME + "_kernel", a.text(), dict(vgpr=100+64+4, sgpr=64, accum=104))])
open(sys.argv[1], "w").write(txt)
```

```python
import sys
from common import *

a = Asm()
a("s_cmp_ge_u32 s2, 2304")
a("s_cbranch_scc1 L_done")
a("s_load_dwordx4 s[4:7], s[0:1], 0")
a("s_load_dwordx4 s[8:11], s[0:1], 16")
a("s_load_dwordx4 s[12:15], s[0:1], 32")
a("s_and_b32 s40, s2, 31")
a("s_lshr_b32 s41, s2, 5")
a("s_waitcnt lgkmcnt(0)")
def srd(d, lo, nbytes):
    a(f"s_mov_b32 s{d}, s{lo}")
    a(f"s_mov_b32 s{d+1}, s{lo+1}")
    a(f"s_mov_b32 s{d+2}, {nbytes}")
    a(f"s_mov_b32 s{d+3}, 0x20000")
srd(16, 4, X_BYTES)
srd(20, 6, QW_BYTES)
srd(24, 8, SC_BYTES)
srd(28, 10, SC_BYTES)
srd(32, 12, AS_BYTES)
srd(36, 14, OUT_BYTES)
a("v_and_b32 v1, 15, v0")
a("v_lshrrev_b32 v2, 4, v0")
a("s_lshl_b32 s42, s40, 6")
a("s_lshl_b32 s43, s41, 6")
a("v_add_u32 v3, s42, v1")
a("s_movk_i32 s44, 1152")
a("v_mul_lo_u32 v3, v3, s44")
a("v_lshl_add_u32 v3, v2, 4, v3")
a("v_lshlrev_b32 v4, 4, v2")
a("s_mov_b32 s45, 147456")
a("v_mul_lo_u32 v5, v2, s45")
a("v_lshl_add_u32 v5, v1, 4, v5")
a("s_lshl_b32 s46, s43, 2")
a("v_add_u32 v5, s46, v5")
a("v_lshlrev_b32 v6, 3, v1")
a("s_lshl_b32 s47, s43, 1")
a("v_add_u32 v6, s47, v6")
a("buffer_load_dwordx2 v[8:9], v6, s[24:27], 0 offen")
a("buffer_load_dwordx2 v[10:11], v6, s[28:31], 0 offen")
for i in range(64):
    a(f"v_accvgpr_write_b32 a{i}, 0")
a("s_waitcnt vmcnt(0)")
a("v_lshlrev_b32 v12, 16, v8")
a("v_and_b32 v13, 0xffff0000, v8")
a("v_lshlrev_b32 v14, 16, v9")
a("v_and_b32 v15, 0xffff0000, v9")
a("v_lshlrev_b32 v16, 16, v10")
a("v_and_b32 v17, 0xffff0000, v10")
a("v_lshlrev_b32 v18, 16, v11")
a("v_and_b32 v19, 0xffff0000, v11")
a("s_mov_b32 s50, 0")
a("s_mov_b32 s51, 0")
a.label("L_k")
XR = 20
AR = 36
QR = 40
for t in range(4):
    a(f"s_add_u32 s52, s50, {t*16*1152}")
    a(f"buffer_load_dwordx4 {vr(XR+4*t,4)}, v3, s[16:19], s52 offen")
a(f"buffer_load_dwordx4 {vr(AR,4)}, v4, s[32:35], s50 offen")
for j in range(8):
    a(f"s_add_u32 s52, s51, {j*18432}")
    a(f"buffer_load_dwordx4 {vr(QR+4*j,4)}, v5, s[20:23], s52 offen")
a("s_waitcnt vmcnt(0)")
AF = 72
for j in range(4):
    a(f"v_lshlrev_b32 v{AF+2*j}, 16, v{AR+j}")
    a(f"v_and_b32 v{AF+2*j+1}, 0xffff0000, v{AR+j}")
T = 80
for t in range(4):
    for j in range(4):
        r = XR + 4*t + j
        a(f"v_lshlrev_b32 v{T}, 16, v{r}")
        a(f"v_and_b32 v{T+1}, 0xffff0000, v{r}")
        a(f"v_mul_f32 v{T}, v{T}, v{AF+2*j}")
        a(f"v_mul_f32 v{T+1}, v{T+1}, v{AF+2*j+1}")
        a(f"v_cvt_pk_bf16_f32 v{r}, v{T}, v{T+1}")
BF = 84
for j in range(8):
    for c in range(4):
        r = QR + 4*j + c
        a(f"v_cvt_f32_i32 v{r}, v{r}")
        a(f"v_sub_f32 v{r}, v{r}, v{16+c}")
for c in range(4):
    for p in range(4):
        a(f"v_cvt_pk_bf16_f32 v{BF+4*c+p}, v{QR+4*(2*p)+c}, v{QR+4*(2*p+1)+c}")
a("s_nop 1")
for t in range(4):
    for c in range(4):
        acc = (t*4 + c)*4
        a(f"v_mfma_f32_16x16x32_bf16 {ar(acc,4)}, {vr(XR+4*t,4)}, {vr(BF+4*c,4)}, {ar(acc,4)}")
a("s_add_u32 s50, s50, 64")
a(f"s_add_u32 s51, s51, {32*18432}")
a("s_cmp_lt_u32 s50, 1152")
a("s_cbranch_scc1 L_k")
a("s_nop 15")
a("v_lshlrev_b32 v7, 2, v2")
a("v_add_u32 v7, s42, v7")
a("s_movk_i32 s44, 9216")
a("v_mul_lo_u32 v7, v7, s44")
a("v_add_u32 v7, v7, v6")
for t in range(4):
    for r in range(4):
        for c in range(4):
            a(f"v_accvgpr_read_b32 v{20+c}, a{(t*4+c)*4+r}")
            a(f"v_mul_f32 v{20+c}, v{20+c}, v{12+c}")
        a("v_cvt_pk_bf16_f32 v24, v20, v21")
        a("v_cvt_pk_bf16_f32 v25, v22, v23")
        a(f"s_mov_b32 s52, {(t*16+r)*9216}")
        a("buffer_store_dwordx2 v[24:25], v7, s[36:39], s52 offen")
        a("s_nop 1")
a.label("L_done")

txt = kernel_file(["; @launch grid=(2304,1,1) block=(64,1,1) lds=0"],
                  [(NAME + "_kernel", a.text(), dict(vgpr=100+64+4, sgpr=64, accum=104))])
open(sys.argv[1], "w").write(txt)
```
